```python
import torch

def _softmax(x, axis=-1):
    return torch.softmax(x, dim=axis)

def _gelu(x):
    return torch.nn.functional.gelu(x, approximate='tanh')

def _silu(x):
    return torch.nn.functional.silu(x)

def _sigmoid(x):
    return torch.sigmoid(x)

def _layernorm(x, axis=-1, eps=1e-05):
    m = x.mean(dim=axis, keepdim=True)
    v = x.var(dim=axis, keepdim=True, unbiased=False)
    return (x - m) / torch.sqrt(v + eps)

def _scatter_add(tgt, idx, src, axis=0):
    return tgt.clone().index_add_(axis, idx, src)

def _segment_sum(src, seg, n):
    out = torch.zeros((n,) + src.shape[1:], dtype=src.dtype)
    return out.index_add_(0, seg, src)

def _pad(x, pw):
    flat = tuple((v for pair in reversed(pw) for v in pair))
    return torch.nn.functional.pad(x, flat)
kernel_name = 'standalone__swin_window_attn__vision'

def setup_inputs():

    _w = lambda a: (lambda t: t.to(torch.bfloat16) if t.is_floating_point() else t)(torch.as_tensor(a))
    H = W = 224 // 8 * 8
    C, win = (192, 8)
    return {'x': _w((lambda *s: torch.randn(*s, dtype=torch.bfloat16) * 0.2)(1, H, W, C)), 'wqkv': _w((lambda *s: torch.randn(*s, dtype=torch.bfloat16) * 0.2)(C, 3 * C)), 'wo': _w((lambda *s: torch.randn(*s, dtype=torch.bfloat16) * 0.05)(C, C))}

def reference(x, wqkv, wo):
    B, H, W, C = x.shape
    win = 8
    nh, nw = (H // win, W // win)
    xw = (lambda x, *d: x.permute(*d))(x.reshape(B, nh, win, nw, win, C), 0, 1, 3, 2, 4, 5)
    xw = xw.reshape(B * nh * nw, win * win, C)
    qkv = xw @ wqkv
    q, k, v = (qkv[..., :C].clone(), qkv[..., C:2 * C].clone(), qkv[..., 2 * C:].clone())
    scale = C ** (-0.5)
    p = _softmax(torch.einsum('bqc,bkc->bqk', q, k) * scale, axis=-1)
    o = torch.einsum('bqk,bkc->bqc', p, v) @ wo
    o = (lambda x, *d: x.permute(*d))(o.reshape(B, nh, nw, win, win, C), 0, 1, 3, 2, 4, 5)
    return o.reshape(B, H, W, C)
```

```python
import re

_REG = re.compile(r'^(-|abs\()?([vas])(?:(\d+)|\[(\d+):(\d+)\])\)?$')

def regs_of(tok):
    tok = tok.strip()
    if tok in ('vcc', 'exec', 'm0', 'scc'):
        return [tok]
    if tok in ('vcc_lo', 'vcc_hi'):
        return ['vcc']
    if tok in ('exec_lo', 'exec_hi'):
        return ['exec']
    m = _REG.match(tok)
    if not m:
        return []
    k = m.group(2)
    if m.group(3) is not None:
        return [k + m.group(3)]
    return [k + str(i) for i in range(int(m.group(4)), int(m.group(5)) + 1)]

def R(k, lo, n=1):
    return f'{k}{lo}' if n == 1 else f'{k}[{lo}:{lo+n-1}]'

TRANS = ('v_exp_f32', 'v_log_f32', 'v_rcp_f32', 'v_rsq_f32', 'v_sqrt_f32', 'v_sin_f32', 'v_cos_f32')

class Inst:
    __slots__ = ('text', 'op', 'kind', 'reads', 'writes', 'srcc', 'ab', 'passes', 'states', 'wide', 'sdata')

def split_ops(rest):
    out, depth, cur = [], 0, ''
    for ch in rest:
        if ch in '[(':
            depth += 1
        if ch in '])':
            depth -= 1
        if ch == ',' and depth == 0:
            out.append(cur.strip()); cur = ''
        else:
            cur += ch
    if cur.strip():
        out.append(cur.strip())
    return out

def parse(text):
    I = Inst()
    I.text = text
    t = text.split(';')[0].strip()
    parts = t.split(None, 1)
    op = parts[0]
    I.op = op
    rest = parts[1] if len(parts) > 1 else ''
    ops = split_ops(rest)
    mods = []
    if ops:
        l = ops[-1].split()
        ops[-1] = l[0]
        mods = l[1:]
    I.reads, I.writes, I.srcc, I.ab, I.sdata = [], [], [], [], []
    I.passes = 0
    I.states = 1
    I.wide = False
    rr = lambda lst: [r for o in lst for r in regs_of(o)]
    if op == 's_nop':
        I.kind = 'nop'; I.states = int(ops[0], 0) + 1
    elif op in ('s_waitcnt', 's_barrier', 's_endpgm', 's_setprio', 's_sleep', 's_branch', 'buffer_inv', 'buffer_wbl2') or op.startswith('s_cbranch'):
        I.kind = 'ctl'
    elif op.startswith('v_mfma'):
        I.kind = 'mfma'
        I.passes = 8 if '32x32' in op else 4
        I.writes = regs_of(ops[0]); I.ab = rr(ops[1:3]); I.srcc = regs_of(ops[3])
        I.reads = I.ab + I.srcc
    elif op.startswith('s_load') or op in ('s_memtime', 's_memrealtime'):
        I.kind = 'smem'; I.writes = regs_of(ops[0]); I.reads = rr(ops[1:])
    elif op.startswith('s_cmp') or op.startswith('s_bitcmp'):
        I.kind = 'salu'; I.reads = rr(ops); I.writes = ['scc']
    elif op.startswith('s_'):
        I.kind = 'salu'; I.writes = regs_of(ops[0]); I.reads = rr(ops[1:])
        if 'saveexec' in op:
            I.writes += ['exec']; I.reads += ['exec']
    elif op.startswith('ds_read') or op.startswith('ds_bpermute') or op.startswith('ds_swizzle'):
        I.kind = 'dsr'; I.writes = regs_of(ops[0]); I.reads = rr(ops[1:])
    elif op.startswith('ds_write'):
        I.kind = 'dsw'; I.reads = rr(ops)
    elif op.startswith('buffer_load') or op.startswith('global_load'):
        if 'lds' in mods or '_lds_' in op:
            I.kind = 'dma'; I.reads = rr(ops) + ['m0']
        else:
            I.kind = 'vld'; I.writes = regs_of(ops[0]); I.reads = rr(ops[1:])
            if 'd16' in op:
                I.reads += I.writes
    elif op.startswith('buffer_store'):
        I.kind = 'vst'; I.reads = rr(ops); I.sdata = regs_of(ops[0])
        I.wide = op.endswith('x3') or op.endswith('x4')
    elif op.startswith('global_store'):
        I.kind = 'vst'; I.reads = rr(ops); I.sdata = regs_of(ops[1])
        I.wide = op.endswith('x3') or op.endswith('x4')
    elif op.startswith('global_atomic') or op.startswith('buffer_atomic'):
        I.kind = 'vst'; I.reads = rr(ops)
        if 'sc0' in mods:
            I.kind = 'vld'; I.writes = regs_of(ops[0]); I.reads = rr(ops[1:]) if op.startswith('global') else rr(ops)
    elif op.startswith('v_'):
        I.kind = 'trans' if op.replace('_e32', '').replace('_e64', '') in TRANS else 'valu'
        if op.startswith('v_permlane') and 'swap' in op:
            I.writes = rr(ops[:2]); I.reads = rr(ops[:2]); I.kind = 'perm'
        elif op.startswith('v_cmp'):
            I.writes = regs_of(ops[0]); I.reads = rr(ops[1:])
            if op.startswith('v_cmpx'):
                I.writes += ['exec']
        elif '_co_' in op:
            I.writes = rr(ops[:2]); I.reads = rr(ops[2:])
        else:
            I.writes = regs_of(ops[0]); I.reads = rr(ops[1:])
            if op.startswith('v_fmac') or op.startswith('v_pk_fmac') or op.startswith('v_writelane'):
                I.reads += I.writes
            if op.startswith('v_cndmask') and len(ops) == 3:
                I.reads += ['vcc']
        if 'dpp' in op or any(m.startswith('row_') or m.startswith('quad_perm') for m in mods):
            I.kind = 'dpp'
    else:
        raise ValueError('unknown op ' + text)
    return I

VALUK = ('valu', 'trans', 'perm', 'dpp')
VMEMK = ('vld', 'vst', 'dma')

def need_states(P, C):
    n = 0
    pw, pr = set(P.writes), set(P.reads)
    cw, cr = set(C.writes), set(C.reads)
    if P.kind in VALUK:
        vw = {r for r in pw if r[0] in 'va' and r != 'vcc'}
        sw = {r for r in pw if r[0] == 's' or r == 'vcc'}
        if C.kind == 'mfma' and vw & cr: n = max(n, 2)
        if C.kind == 'perm' and vw & cr: n = max(n, 2)
        if C.kind == 'dpp' and vw & cr: n = max(n, 2)
        if C.op.startswith('v_readlane') or C.op.startswith('v_readfirstlane'):
            if vw & cr: n = max(n, 1)
        if P.kind == 'trans' and C.kind in ('valu', 'perm', 'dpp', 'mfma') and vw & cr: n = max(n, 1)
        if sw & cr:
            if C.kind in VMEMK: n = max(n, 5)
            if C.kind in VALUK: n = max(n, 4 if C.op.startswith(('v_readlane', 'v_writelane')) else 2)
            if C.kind in ('salu', 'smem'): n = max(n, 1)
        if 'exec' in pw:
            if C.kind == 'mfma': n = max(n, 4)
            if C.kind == 'dpp': n = max(n, 5)
            if C.kind == 'perm' or C.op.startswith(('v_readlane', 'v_readfirstlane', 'v_writelane')): n = max(n, 4)
    if P.kind == 'salu' and 'm0' in pw and (C.kind == 'dma' or 'addtid' in C.op):
        n = max(n, 1)
    if P.kind == 'vst' and P.wide:
        if set(P.sdata) & cw:
            n = max(n, 2 if C.kind in VALUK else 1)
    if P.kind == 'mfma':
        big = {4: 8, 8: 12}[P.passes]
        if C.kind == 'mfma':
            if pw & set(C.ab): n = max(n, big)
            if pw & set(C.srcc):
                if not (P.writes == C.srcc and P.passes == C.passes):
                    n = max(n, big - 2)
            elif pw & cw:
                n = max(n, big - 2)
        elif C.kind in VALUK:
            if pw & (cr | cw): n = max(n, big)
            if set(P.srcc) & cw: n = max(n, {4: 3, 8: 7}[P.passes])
        elif C.kind in VMEMK + ('dsr', 'dsw'):
            if pw & (cr | cw): n = max(n, big)
            if set(P.srcc) & cw: n = max(n, {4: 3, 8: 7}[P.passes])
    return n

class Prog:
    def __init__(self):
        self.lines = []
        self.hist = []
        self.vm = []
        self.lg = []
        self.nops = 0
        self.waits = 0
        self.count = {}
    def raw(self, text):
        self.lines.append(text)
    def label(self, name):
        self.lines.append(name + ':')
    def comment(self, t):
        self.lines.append('    ; ' + t)
    def reset_state(self):
        self.hist = []; self.vm = []; self.lg = []
    def _push(self, I):
        self.lines.append('    ' + I.text)
        self.hist.append(I)
        if len(self.hist) > 40:
            self.hist.pop(0)
        self.count[I.kind] = self.count.get(I.kind, 0) + 1
    def wait(self, vm=None, lg=None):
        s = []
        if vm is not None:
            vm = min(vm, 63)
            s.append(f'vmcnt({vm})')
            self.vm = self.vm[len(self.vm) - vm:] if vm < len(self.vm) and vm > 0 else ([] if vm == 0 else self.vm)
        if lg is not None:
            lg = min(lg, 15)
            s.append(f'lgkmcnt({lg})')
            self.lg = self.lg[len(self.lg) - lg:] if lg < len(self.lg) and lg > 0 else ([] if lg == 0 else self.lg)
        self._push(parse('s_waitcnt ' + ' '.join(s)))
        self.waits += 1
    def __call__(self, text):
        I = parse(text)
        touched = set(I.reads) | set(I.writes)
        vm = lg = None
        for k, d in enumerate(self.vm):
            if d & touched:
                vm = len(self.vm) - 1 - k
        for k, (kind, d) in enumerate(self.lg):
            if d & touched:
                lg = len(self.lg) - 1 - k
        if lg is not None and any(kind == 'smem' for kind, d in self.lg):
            lg = 0
        if vm is not None or lg is not None:
            self.wait(vm, lg)
        need, dist = 0, 0
        for P in reversed(self.hist):
            n = need_states(P, I)
            if n - dist > need:
                need = n - dist
            dist += P.states
            if dist > 20:
                break
        while need > 0:
            k = min(need, 16)
            self._push(parse(f's_nop {k-1}'))
            self.nops += k
            need -= k
        self._push(I)
        if I.kind in VMEMK:
            self.vm.append(set(I.writes))
        elif I.kind in ('dsr', 'dsw'):
            self.lg.append(('ds', set(I.writes)))
        elif I.kind == 'smem':
            self.lg.append(('smem', set(I.writes)))
    def text(self):
        return '\n'.join(self.lines) + '\n'
```

```python
import sys, math
sys.path.insert(0, 'gen')
from asmgen import *

NAME = 'standalone__swin_window_attn__vision'
XB = 19267584
HDR = open('cdna_kernels/%s.s.ref' % NAME).read().split('; Override')[0]

def f32hex(x):
    import struct
    return '0x%08x' % struct.unpack('<I', struct.pack('<f', x))[0]

def srd(p, d, b, n):
    p(f's_mov_b32 s{d}, s{b}')
    p(f's_and_b32 s{d+1}, s{b+1}, 0xffff')
    p(f's_mov_b32 s{d+2}, {n}')
    p(f's_mov_b32 s{d+3}, 0x20000')

def fold_kernel(p):
    p.raw('.p2align 8'); p.label('fold_kernel')
    p.reset_state()
    p('s_cmp_ge_u32 s2, 72'); p('s_cbranch_scc1 fold_done')
    p('s_load_dwordx4 s[4:7], s[0:1], 8')
    p('s_load_dwordx2 s[8:9], s[0:1], 40')
    p('s_cmp_ge_u32 s2, 36')
    p('s_cselect_b32 s10, 36, 0')
    p('s_sub_u32 s11, s2, s10')
    p('s_mul_i32 s12, s11, 43'); p('s_lshr_b32 s12, s12, 8')
    p('s_mul_i32 s13, s12, 6'); p('s_sub_u32 s13, s11, s13')
    p('v_and_b32 v1, 31, v0')
    p('v_lshrrev_b32 v2, 5, v0')
    p('v_and_b32 v3, 19, v1')
    p('v_and_b32 v4, 4, v1'); p('v_lshlrev_b32 v4, 1, v4')
    p('v_and_b32 v5, 8, v1'); p('v_lshrrev_b32 v5, 1, v5')
    p('v_or_b32 v3, v3, v4'); p('v_or_b32 v3, v3, v5')
    p('v_mul_u32_u24 v6, 1152, v3')
    p('v_lshl_add_u32 v6, v2, 4, v6')
    srd(p, 16, 4, 192*576*2)
    srd(p, 20, 6, 192*192*2)
    srd(p, 24, 8, 147456)
    p('s_mul_i32 s14, s12, %d' % (32*1152))
    p('s_cmp_ge_u32 s2, 36')
    p('s_cbranch_scc1 fold_n')
    p('s_mul_i32 s15, s13, %d' % (32*1152)); p('s_add_u32 s15, s15, 384')
    for s in range(12):
        p(f'buffer_load_dwordx4 v[{16+4*s}:{19+4*s}], v6, s[16:19], s14 offen offset:{32*s}')
        p(f'buffer_load_dwordx4 v[{64+4*s}:{67+4*s}], v6, s[16:19], s15 offen offset:{32*s}')
    p('s_mov_b32 s28, %s' % f32hex(192**-0.5 * math.log2(math.e)))
    p('s_mov_b32 s29, 0')
    p.wait(vm=0)
    p('s_branch fold_mm')
    p.label('fold_n')
    p.reset_state()
    p('s_add_u32 s14, s14, 768')
    for s in range(12):
        p(f'buffer_load_dwordx4 v[{16+4*s}:{19+4*s}], v6, s[16:19], s14 offen offset:{32*s}')
    p('v_mul_u32_u24 v7, %d, v2' % (8*384))
    p('v_lshl_add_u32 v7, v3, 1, v7')
    p('s_lshl_b32 s15, s13, 6')
    for s in range(12):
        for j in range(8):
            p(f'buffer_load_ushort v{(128 if j & 1 else 64)+4*s+j//2}, v7, s[20:23], s15 offen offset:{j*384}')
        p('s_add_u32 s15, s15, %d' % (16*384))
    for r in range(48):
        p(f'v_lshl_or_b32 v{64+r}, v{128+r}, 16, v{64+r}')
    p('s_mov_b32 s28, 1.0')
    p('s_mov_b32 s29, 73728')
    p.wait(vm=0)
    p.label('fold_mm')
    p.reset_state()
    p('s_nop 1')
    for s in range(12):
        c = '0' if s == 0 else 'v[112:127]'
        p(f'v_mfma_f32_32x32x16_bf16 v[112:127], v[{16+4*s}:{19+4*s}], v[{64+4*s}:{67+4*s}], {c}')
    for r in range(16):
        p(f'v_mul_f32 v{112+r}, s28, v{112+r}')
    for r in range(8):
        p(f'v_cvt_pk_bf16_f32 v{8+r}, v{112+2*r}, v{113+2*r}')
    p('s_mul_i32 s30, s13, 12'); p('s_lshl_b32 s31, s12, 1'); p('s_add_u32 s30, s30, s31')
    p('s_lshl_b32 s30, s30, 10'); p('s_add_u32 s30, s30, s29')
    p('v_lshlrev_b32 v1, 4, v0')
    p('buffer_store_dwordx4 v[8:11], v1, s[24:27], s30 offen')
    p('buffer_store_dwordx4 v[12:15], v1, s[24:27], s30 offen offset:1024')
    p.label('fold_done')
    p('s_endpgm')

MF = 'v_mfma_f32_32x32x16_bf16'
def main_kernel(p, stflags=''):
    p.raw('.p2align 8'); p.label(NAME + '_kernel')
    p.reset_state()
    p('s_cmp_ge_u32 s2, 196'); p('s_cbranch_scc1 main_done')
    p('s_load_dwordx2 s[4:5], s[0:1], 0')
    p('s_load_dwordx2 s[6:7], s[0:1], 24')
    p('s_load_dwordx2 s[8:9], s[0:1], 40')
    p('v_lshrrev_b32 v1, 6, v0')
    p('v_and_b32 v0, 63, v0')
    p('v_readfirstlane_b32 s3, v1')
    p('s_lshl_b32 s10, s2, 2'); p('s_add_u32 s10, s10, s3')
    p('s_mul_i32 s11, s10, 2341'); p('s_lshr_b32 s11, s11, 16')
    p('s_mul_i32 s12, s11, 28'); p('s_sub_u32 s12, s10, s12')
    p('s_mul_i32 s11, s11, 688128'); p('s_mul_i32 s12, s12, 3072')
    p('s_add_u32 s13, s11, s12')
    p('s_add_u32 s14, s13, %d' % (4*86016))
    p('v_bfe_u32 v1, v0, 3, 2'); p('v_mul_u32_u24 v1, 86016, v1')
    p('v_and_b32 v2, 7, v0'); p('v_mul_u32_u24 v2, 384, v2')
    p('v_lshrrev_b32 v3, 5, v0'); p('v_lshlrev_b32 v3, 4, v3')
    p('v_add3_u32 v1, v1, v2, v3')
    p('v_lshlrev_b32 v2, 4, v0')
    p('v_add_u32 v3, 0x10000, v2')
    p('v_add_u32 v4, 0x20000, v2')
    srd(p, 16, 4, XB); srd(p, 20, 6, XB); srd(p, 24, 8, 147456)
    X = lambda tt, s: R('a', 48*tt + 4*s, 4)
    p('s_lshl_b32 s15, s3, 10')
    for k in range(18):
        p('s_mov_b32 m0, s15')
        p('buffer_load_dwordx4 v2, s[24:27], s15 offen lds')
        p('s_add_u32 s15, s15, 4096')
    for s in range(12):
        p(f'buffer_load_dwordx4 {X(0,s)}, v1, s[16:19], s13 offen offset:{32*s}')
        p(f'buffer_load_dwordx4 {X(1,s)}, v1, s[16:19], s14 offen offset:{32*s}')
    for k in range(18):
        p('s_mov_b32 m0, s15')
        p('buffer_load_dwordx4 v2, s[24:27], s15 offen lds')
        p('s_add_u32 s15, s15, 4096')
    p.wait(vm=0)
    p('s_barrier')
    NR = 8
    WF = lambda k: R('a', 96 + 4*(k % NR), 4)
    def rd(k):
        if k >= 144: return None
        a = k * 1024
        return f'ds_read_b128 {WF(k)}, v{2 + a//65536} offset:{a % 65536}'
    T = lambda b, q: 8 + 32*b + 16*q
    S = lambda kt, qt: 72 + 32*qt + 16*kt
    TB = lambda qt, e: 136 + 8*qt + 4*e
    PB = lambda qt, u: 152 + 16*qt + 4*u
    VB = lambda j, u: 184 + 16*(j % 4) + 4*u
    O = lambda b, qt: 72 + 32*b + 16*qt
    v16 = lambda r: R('v', r, 16)
    v4 = lambda r: R('v', r, 4)
    stream = []
    def tmf(i):
        out = []
        for s in range(12):
            for qt in range(2):
                d = v16(T(i % 2, qt))
                out.append([f'{MF} {d}, {WF(12*i+s)}, {X(qt,s)}, {"0" if s == 0 else d}', []])
            r = rd(12*i + s + 5)
            if r: out[-1][1].append(r)
        return out
    def vmf(j):
        out = []
        for s in range(12):
            for kt in range(2):
                d = v16(T(j % 2, kt))
                out.append([f'{MF} {d}, {X(kt,s)}, {WF(72+12*j+s)}, {"0" if s == 0 else d}', []])
            r = rd(72 + 12*j + s + 5)
            if r: out[-1][1].append(r)
        return out
    def smf(i):
        out = []
        for e in range(2):
            for qt in range(2):
                for kt in range(2):
                    d = v16(S(kt, qt))
                    out.append([f'{MF} {d}, {X(kt,2*i+e)}, {v4(TB(qt,e))}, {"0" if (i == 0 and e == 0) else d}', []])
        return out
    def omf(j):
        out = []
        for u in range(4):
            for qt in range(2):
                d = v16(O(j % 2, qt))
                out.append([f'{MF} {d}, {v4(VB(j,u))}, {v4(PB(qt,u))}, {"0" if u == 0 else d}', []])
        return out
    def tcvt(i):
        return [f'v_cvt_pk_bf16_f32 v{TB(qt,0)+r}, v{T(i%2,qt)+2*r}, v{T(i%2,qt)+2*r+1}' for qt in range(2) for r in range(8)]
    def vcvt(j):
        return [f'v_cvt_pk_bf16_f32 v{VB(j,2*kt)+r}, v{T(j%2,kt)+2*r}, v{T(j%2,kt)+2*r+1}' for kt in range(2) for r in range(8)]
    def ostore(j):
        out = []
        for qt in range(2):
            for e in range(2):
                for r in range(4):
                    out.append(f'v_cvt_pk_bf16_f32 v{TB(qt,e)+r}, v{O(j%2,qt)+8*e+2*r}, v{O(j%2,qt)+8*e+2*r+1}')
                out.append(f'buffer_store_dwordx4 {v4(TB(qt,e))}, v1, s[20:23], s{13+qt} offen offset:{64*j+32*e}{stflags}')
        return out
    def softmax():
        out = []
        for qt in range(2):
            vals = [S(0, qt) + r for r in range(32)]
            m, t, sm = 248 + 4*qt, 249 + 4*qt, 250 + 4*qt
            out.append(f'v_max3_f32 v{m}, v{vals[0]}, v{vals[1]}, v{vals[2]}')
            for k in range(3, 31, 2):
                out.append(f'v_max3_f32 v{m}, v{m}, v{vals[k]}, v{vals[k+1]}')
            out.append(f'v_max_f32 v{m}, v{m}, v{vals[31]}')
            out.append(f'v_mov_b32 v{t}, v{m}')
            out.append(f'v_permlane32_swap_b32 v{m}, v{t}')
            out.append(f'v_max_f32 v{m}, v{m}, v{t}')
            for k in range(32):
                out.append(f'v_sub_f32 v{vals[k]}, v{vals[k]}, v{m}')
            for k in range(32):
                out.append(f'v_exp_f32 v{vals[k]}, v{vals[k]}')
                if k == 2: out.append(f'v_add_f32 v{sm}, v{vals[0]}, v{vals[1]}')
                if k > 2: out.append(f'v_add_f32 v{sm}, v{sm}, v{vals[k-1]}')
            out.append(f'v_add_f32 v{sm}, v{sm}, v{vals[31]}')
            out.append(f'v_mov_b32 v{t}, v{sm}')
            out.append(f'v_permlane32_swap_b32 v{sm}, v{t}')
            out.append(f'v_add_f32 v{sm}, v{sm}, v{t}')
            out.append(f'v_rcp_f32 v{sm}, v{sm}')
            for k in range(0, 32, 2):
                out.append(f'v_mul_f32 v{vals[k]}, v{sm}, v{vals[k]}')
                out.append(f'v_mul_f32 v{vals[k+1]}, v{sm}, v{vals[k+1]}')
                out.append(f'v_cvt_pk_bf16_f32 v{PB(qt,0)+k//2}, v{vals[k]}, v{vals[k+1]}')
        return out
    def place(seg, start, items, per):
        k = start
        it = list(items)
        while it:
            assert k < len(seg), 'overflow placing fillers'
            cost = 0
            while it and cost < per:
                x = it.pop(0)
                seg[k][1].append(x)
                cost += 2 if x.startswith('v_exp') else 1
            k += 1
        return k
    for k in range(5):
        p(rd(k))
    for i in range(6):
        seg = tmf(i)
        if i > 0:
            place(seg, 8, tcvt(i-1), 2)
            seg += smf(i-1)
        stream += seg
    seg = vmf(0)
    place(seg, 8, tcvt(5), 4)
    seg = seg[:14] + smf(5) + seg[14:]
    stream += seg
    seg = vmf(1) + vmf(2) + vmf(3)
    place(seg, 6, vcvt(0), 1)
    place(seg, 24+6, vcvt(1), 1)
    place(seg, 48+6, vcvt(2), 1)
    base = len(stream)
    stream += seg
    k = place(stream, base - 4, softmax(), 5)
    print('softmax ends at', k - base, file=sys.stderr)
    seg = omf(0) + omf(1)
    place(seg, 4, vcvt(3), 2)
    stream += seg
    seg = vmf(4)
    place(seg, 0, ostore(0), 3)
    place(seg, 8, ostore(1), 3)
    stream += seg
    seg = omf(2) + omf(3)
    place(seg, 8, vcvt(4), 2)
    stream += seg
    seg = vmf(5)
    place(seg, 2, ostore(2), 3)
    place(seg, 10, ostore(3), 3)
    stream += seg
    seg = omf(4)
    place(seg, 4, vcvt(5), 4)
    stream += seg
    seg = omf(5)
    place(seg, 3, ostore(4), 4)
    stream += seg
    for m, f in stream:
        p(m)
        for x in f: p(x)
    for x in ostore(5): p(x)
    p.label('main_done')
    p('s_endpgm')

def kd(name, vg, acc, sg=40):
    return f'''.p2align 6
.amdhsa_kernel {name}
  .amdhsa_next_free_vgpr {vg}
  .amdhsa_next_free_sgpr {sg}
  .amdhsa_accum_offset {acc}
  .amdhsa_group_segment_fixed_size 0
  .amdhsa_kernarg_size 48
  .amdhsa_user_sgpr_count 2
  .amdhsa_user_sgpr_kernarg_segment_ptr 1
  .amdhsa_system_sgpr_workgroup_id_x 1
.end_amdhsa_kernel
'''

if __name__ == '__main__':
    out = sys.argv[1]
    stflags = sys.argv[2] if len(sys.argv) > 2 else ''
    p = Prog()
    p.raw(HDR.rstrip())
    p.raw('; @launch kernel=fold_kernel grid=(72,1,1) block=(64,1,1) lds=0')
    p.raw(f'; @launch kernel={NAME}_kernel grid=(196,1,1) block=(256,1,1) lds=147456')
    p.raw('.amdgcn_target "amdgcn-amd-amdhsa--gfx950"')
    p.raw('.text')
    p.raw(f'.globl {NAME}_kernel\n.type {NAME}_kernel,@function\n.globl fold_kernel\n.type fold_kernel,@function')
    fold_kernel(p)
    main_kernel(p, (' ' + stflags) if stflags else '')
    p.raw('.section .rodata,"a"')
    p.raw(kd('fold_kernel', 176, 176))
    p.raw(kd(NAME + '_kernel', 384, 256))
    open(out, 'w').write(p.text())
    print('nops', p.nops, 'waits', p.waits, p.count, file=sys.stderr)
```

```python
import sys, math
sys.path.insert(0, 'gen')
from asmgen import *

NAME = 'standalone__swin_window_attn__vision'
XB = 19267584
HDR = open('cdna_kernels/%s.s.ref' % NAME).read().split('; Override')[0]

def f32hex(x):
    import struct
    return '0x%08x' % struct.unpack('<I', struct.pack('<f', x))[0]

def srd(p, d, b, n):
    p(f's_mov_b32 s{d}, s{b}')
    p(f's_and_b32 s{d+1}, s{b+1}, 0xffff')
    p(f's_mov_b32 s{d+2}, {n}')
    p(f's_mov_b32 s{d+3}, 0x20000')

STAMP = False
def stamp(p, k):
    if STAMP:
        p(f's_memrealtime s[{40+2*k}:{41+2*k}]')
def stamp_out(p, n, idreg, wsreg, base):
    if not STAMP: return
    p.wait(vm=0, lg=0)
    stamp(p, n-1)
    p.wait(lg=0)
    p(f's_lshl_b32 s36, s{idreg}, 7'); p(f's_add_u32 s36, s36, {base}')
    p('s_getreg_b32 s37, hwreg(HW_REG_XCC_ID)')
    p('s_getreg_b32 s38, hwreg(HW_REG_HW_ID)')
    p(f's_mov_b32 s{wsreg+2}, 0x10000000')
    p('v_mov_b32 v0, 0')
    for k in range(n):
        p(f'v_mov_b32 v2, s{40+2*k}'); p(f'v_mov_b32 v3, s{41+2*k}')
        p(f'buffer_store_dwordx2 v[2:3], v0, s[{wsreg}:{wsreg+3}], s36 offen offset:{8*k}')
    p('v_mov_b32 v2, s37'); p('v_mov_b32 v3, s38')
    p(f'buffer_store_dwordx2 v[2:3], v0, s[{wsreg}:{wsreg+3}], s36 offen offset:120')
def fold_kernel(p):
    p.raw('.p2align 8'); p.label('fold_kernel')
    p.reset_state()
    p('s_cmp_ge_u32 s2, 72'); p('s_cbranch_scc1 fold_done')
    stamp(p, 0)
    p('s_load_dwordx4 s[4:7], s[0:1], 8')
    p('s_load_dwordx2 s[8:9], s[0:1], 40')
    p('s_cmp_ge_u32 s2, 36')
    p('s_cselect_b32 s10, 36, 0')
    p('s_sub_u32 s11, s2, s10')
    p('s_mul_i32 s12, s11, 43'); p('s_lshr_b32 s12, s12, 8')
    p('s_mul_i32 s13, s12, 6'); p('s_sub_u32 s13, s11, s13')
    p('v_and_b32 v1, 31, v0')
    p('v_lshrrev_b32 v2, 5, v0')
    p('v_and_b32 v3, 19, v1')
    p('v_and_b32 v4, 4, v1'); p('v_lshlrev_b32 v4, 1, v4')
    p('v_and_b32 v5, 8, v1'); p('v_lshrrev_b32 v5, 1, v5')
    p('v_or_b32 v3, v3, v4'); p('v_or_b32 v3, v3, v5')
    p('v_mul_u32_u24 v6, 1152, v3')
    p('v_lshl_add_u32 v6, v2, 4, v6')
    srd(p, 16, 4, 192*576*2)
    srd(p, 20, 6, 192*192*2)
    srd(p, 24, 8, 147456)
    p('s_mul_i32 s14, s12, %d' % (32*1152))
    stamp(p, 1)
    p('s_cmp_ge_u32 s2, 36')
    p('s_cbranch_scc1 fold_n')
    p('s_mul_i32 s15, s13, %d' % (32*1152)); p('s_add_u32 s15, s15, 384')
    for s in range(12):
        p(f'buffer_load_dwordx4 v[{16+4*s}:{19+4*s}], v6, s[16:19], s14 offen offset:{32*s}')
        p(f'buffer_load_dwordx4 v[{64+4*s}:{67+4*s}], v6, s[16:19], s15 offen offset:{32*s}')
    p('s_mov_b32 s28, %s' % f32hex(192**-0.5 * math.log2(math.e)))
    p('s_mov_b32 s29, 0')
    p.wait(vm=0)
    p('s_branch fold_mm')
    p.label('fold_n')
    p.reset_state()
    p('s_add_u32 s14, s14, 768')
    for s in range(12):
        p(f'buffer_load_dwordx4 v[{16+4*s}:{19+4*s}], v6, s[16:19], s14 offen offset:{32*s}')
    p('v_mul_u32_u24 v7, %d, v2' % (8*384))
    p('v_lshl_add_u32 v7, v3, 1, v7')
    p('s_lshl_b32 s15, s13, 6')
    for s in range(12):
        for j in range(8):
            p(f'buffer_load_ushort v{(128 if j & 1 else 64)+4*s+j//2}, v7, s[20:23], s15 offen offset:{j*384}')
        p('s_add_u32 s15, s15, %d' % (16*384))
    for r in range(48):
        p(f'v_lshl_or_b32 v{64+r}, v{128+r}, 16, v{64+r}')
    p('s_mov_b32 s28, 1.0')
    p('s_mov_b32 s29, 73728')
    p.wait(vm=0)
    p.label('fold_mm')
    p.reset_state()
    p('s_nop 1')
    stamp(p, 2)
    for s in range(12):
        c = '0' if s == 0 else 'v[112:127]'
        p(f'v_mfma_f32_32x32x16_bf16 v[112:127], v[{16+4*s}:{19+4*s}], v[{64+4*s}:{67+4*s}], {c}')
    for r in range(16):
        p(f'v_mul_f32 v{112+r}, s28, v{112+r}')
    for r in range(8):
        p(f'v_cvt_pk_bf16_f32 v{8+r}, v{112+2*r}, v{113+2*r}')
    p('s_mul_i32 s30, s13, 12'); p('s_lshl_b32 s31, s12, 1'); p('s_add_u32 s30, s30, s31')
    p('s_lshl_b32 s30, s30, 10'); p('s_add_u32 s30, s30, s29')
    p('v_lshlrev_b32 v1, 4, v0')
    p('buffer_store_dwordx4 v[8:11], v1, s[24:27], s30 offen')
    p('buffer_store_dwordx4 v[12:15], v1, s[24:27], s30 offen offset:1024')
    stamp(p, 3)
    stamp_out(p, 5, 2, 24, 0x80000)
    p.label('fold_done')
    p('s_endpgm')

MF = 'v_mfma_f32_32x32x16_bf16'
def main_kernel(p, stflags=''):
    p.raw('.p2align 8'); p.label(NAME + '_kernel')
    p.reset_state()
    p('s_cmp_ge_u32 s2, 196'); p('s_cbranch_scc1 main_done')
    stamp(p, 0)
    p('s_load_dwordx2 s[4:5], s[0:1], 0')
    p('s_load_dwordx2 s[6:7], s[0:1], 24')
    p('s_load_dwordx2 s[8:9], s[0:1], 40')
    p('v_lshrrev_b32 v1, 6, v0')
    p('v_and_b32 v0, 63, v0')
    p('v_readfirstlane_b32 s3, v1')
    p('s_lshl_b32 s10, s2, 2'); p('s_add_u32 s10, s10, s3')
    p('s_mul_i32 s11, s10, 2341'); p('s_lshr_b32 s11, s11, 16')
    p('s_mul_i32 s12, s11, 28'); p('s_sub_u32 s12, s10, s12')
    p('s_mul_i32 s11, s11, 688128'); p('s_mul_i32 s12, s12, 3072')
    p('s_add_u32 s13, s11, s12')
    p('s_add_u32 s14, s13, %d' % (4*86016))
    p('v_bfe_u32 v1, v0, 3, 2'); p('v_mul_u32_u24 v1, 86016, v1')
    p('v_and_b32 v2, 7, v0'); p('v_mul_u32_u24 v2, 384, v2')
    p('v_lshrrev_b32 v3, 5, v0'); p('v_lshlrev_b32 v3, 4, v3')
    p('v_add3_u32 v1, v1, v2, v3')
    p('v_lshlrev_b32 v2, 4, v0')
    p('v_add_u32 v3, 0x10000, v2')
    p('v_add_u32 v4, 0x20000, v2')
    srd(p, 16, 4, XB); srd(p, 20, 6, XB); srd(p, 24, 8, 147456)
    X = lambda tt, s: R('a', 48*tt + 4*s, 4)
    stamp(p, 1)
    p('s_lshl_b32 s15, s3, 10')
    for k in range(18):
        p('s_mov_b32 m0, s15')
        p('buffer_load_dwordx4 v2, s[24:27], s15 offen lds')
        p('s_add_u32 s15, s15, 4096')
    for s in range(12):
        p(f'buffer_load_dwordx4 {X(0,s)}, v1, s[16:19], s13 offen offset:{32*s}')
        p(f'buffer_load_dwordx4 {X(1,s)}, v1, s[16:19], s14 offen offset:{32*s}')
    for k in range(18):
        p('s_mov_b32 m0, s15')
        p('buffer_load_dwordx4 v2, s[24:27], s15 offen lds')
        p('s_add_u32 s15, s15, 4096')
    stamp(p, 2)
    if STAMP:
        p.wait(vm=42); stamp(p, 3); p.wait(vm=18); stamp(p, 4)
    p.wait(vm=0)
    stamp(p, 5)
    p('s_barrier')
    stamp(p, 6)
    if STAMP: p.wait(lg=0)
    NR = 8
    WF = lambda k: R('a', 96 + 4*(k % NR), 4)
    def rd(k):
        if k >= 144: return None
        a = k * 1024
        return f'ds_read_b128 {WF(k)}, v{2 + a//65536} offset:{a % 65536}'
    T = lambda b, q: 8 + 32*b + 16*q
    S = lambda kt, qt: 72 + 32*qt + 16*kt
    TB = lambda qt, e: 136 + 8*qt + 4*e
    PB = lambda qt, u: 152 + 16*qt + 4*u
    VB = lambda j, u: 184 + 16*(j % 4) + 4*u
    O = lambda b, qt: 72 + 32*b + 16*qt
    v16 = lambda r: R('v', r, 16)
    v4 = lambda r: R('v', r, 4)
    stream = []
    def tmf(i):
        out = []
        for s in range(12):
            for qt in range(2):
                d = v16(T(i % 2, qt))
                out.append([f'{MF} {d}, {WF(12*i+s)}, {X(qt,s)}, {"0" if s == 0 else d}', []])
            r = rd(12*i + s + 5)
            if r: out[-1][1].append(r)
        return out
    def vmf(j):
        out = []
        for s in range(12):
            for kt in range(2):
                d = v16(T(j % 2, kt))
                out.append([f'{MF} {d}, {X(kt,s)}, {WF(72+12*j+s)}, {"0" if s == 0 else d}', []])
            r = rd(72 + 12*j + s + 5)
            if r: out[-1][1].append(r)
        return out
    def smf(i):
        out = []
        for e in range(2):
            for qt in range(2):
                for kt in range(2):
                    d = v16(S(kt, qt))
                    out.append([f'{MF} {d}, {X(kt,2*i+e)}, {v4(TB(qt,e))}, {"0" if (i == 0 and e == 0) else d}', []])
        return out
    def omf(j):
        out = []
        for u in range(4):
            for qt in range(2):
                d = v16(O(j % 2, qt))
                out.append([f'{MF} {d}, {v4(VB(j,u))}, {v4(PB(qt,u))}, {"0" if u == 0 else d}', []])
        return out
    def tcvt(i):
        return [f'v_cvt_pk_bf16_f32 v{TB(qt,0)+r}, v{T(i%2,qt)+2*r}, v{T(i%2,qt)+2*r+1}' for qt in range(2) for r in range(8)]
    def vcvt(j):
        return [f'v_cvt_pk_bf16_f32 v{VB(j,2*kt)+r}, v{T(j%2,kt)+2*r}, v{T(j%2,kt)+2*r+1}' for kt in range(2) for r in range(8)]
    def ostore(j):
        out = []
        for qt in range(2):
            for e in range(2):
                for r in range(4):
                    out.append(f'v_cvt_pk_bf16_f32 v{TB(qt,e)+r}, v{O(j%2,qt)+8*e+2*r}, v{O(j%2,qt)+8*e+2*r+1}')
                out.append(f'buffer_store_dwordx4 {v4(TB(qt,e))}, v1, s[20:23], s{13+qt} offen offset:{64*j+32*e}{stflags}')
        return out
    def softmax():
        out = []
        for qt in range(2):
            vals = [S(0, qt) + r for r in range(32)]
            m, t, sm = 248 + 4*qt, 249 + 4*qt, 250 + 4*qt
            out.append(f'v_max3_f32 v{m}, v{vals[0]}, v{vals[1]}, v{vals[2]}')
            for k in range(3, 31, 2):
                out.append(f'v_max3_f32 v{m}, v{m}, v{vals[k]}, v{vals[k+1]}')
            out.append(f'v_max_f32 v{m}, v{m}, v{vals[31]}')
            out.append(f'v_mov_b32 v{t}, v{m}')
            out.append(f'v_permlane32_swap_b32 v{m}, v{t}')
            out.append(f'v_max_f32 v{m}, v{m}, v{t}')
            for k in range(32):
                out.append(f'v_sub_f32 v{vals[k]}, v{vals[k]}, v{m}')
            for k in range(32):
                out.append(f'v_exp_f32 v{vals[k]}, v{vals[k]}')
                if k == 2: out.append(f'v_add_f32 v{sm}, v{vals[0]}, v{vals[1]}')
                if k > 2: out.append(f'v_add_f32 v{sm}, v{sm}, v{vals[k-1]}')
            out.append(f'v_add_f32 v{sm}, v{sm}, v{vals[31]}')
            out.append(f'v_mov_b32 v{t}, v{sm}')
            out.append(f'v_permlane32_swap_b32 v{sm}, v{t}')
            out.append(f'v_add_f32 v{sm}, v{sm}, v{t}')
            out.append(f'v_rcp_f32 v{sm}, v{sm}')
            for k in range(0, 32, 2):
                out.append(f'v_mul_f32 v{vals[k]}, v{sm}, v{vals[k]}')
                out.append(f'v_mul_f32 v{vals[k+1]}, v{sm}, v{vals[k+1]}')
                out.append(f'v_cvt_pk_bf16_f32 v{PB(qt,0)+k//2}, v{vals[k]}, v{vals[k+1]}')
        return out
    def place(seg, start, items, per):
        k = start
        it = list(items)
        while it:
            assert k < len(seg), 'overflow placing fillers'
            cost = 0
            while it and cost < per:
                x = it.pop(0)
                seg[k][1].append(x)
                cost += 2 if x.startswith('v_exp') else 1
            k += 1
        return k
    for k in range(5):
        p(rd(k))
    for i in range(6):
        seg = tmf(i)
        if i > 0:
            place(seg, 8, tcvt(i-1), 2)
            seg += smf(i-1)
        stream += seg
    seg = vmf(0)
    place(seg, 8, tcvt(5), 4)
    seg = seg[:14] + smf(5) + seg[14:]
    stream += seg
    seg = vmf(1) + vmf(2) + vmf(3)
    place(seg, 6, vcvt(0), 1)
    place(seg, 24+6, vcvt(1), 1)
    place(seg, 48+6, vcvt(2), 1)
    base = len(stream)
    stream += seg
    k = place(stream, base - 4, softmax(), 5)
    print('softmax ends at', k - base, file=sys.stderr)
    seg = omf(0) + omf(1)
    place(seg, 4, vcvt(3), 2)
    stream += seg
    seg = vmf(4)
    place(seg, 0, ostore(0), 3)
    place(seg, 8, ostore(1), 3)
    stream += seg
    seg = omf(2) + omf(3)
    place(seg, 8, vcvt(4), 2)
    stream += seg
    seg = vmf(5)
    place(seg, 2, ostore(2), 3)
    place(seg, 10, ostore(3), 3)
    stream += seg
    seg = omf(4)
    place(seg, 4, vcvt(5), 4)
    stream += seg
    seg = omf(5)
    place(seg, 3, ostore(4), 4)
    stream += seg
    for n, (m, f) in enumerate(stream):
        p(m)
        for x in f: p(x)
        if STAMP and n in (95, 191, 287):
            p.raw(f'    s_memrealtime s[{40+2*(7+n//96)}:{41+2*(7+n//96)}]')
            p.wait(lg=0)
    for x in ostore(5): p(x)
    stamp(p, 10)
    stamp_out(p, 12, 10, 24, 0x100000)
    p.label('main_done')
    p('s_endpgm')

def kd(name, vg, acc, sg=72):
    return f'''.p2align 6
.amdhsa_kernel {name}
  .amdhsa_next_free_vgpr {vg}
  .amdhsa_next_free_sgpr {sg}
  .amdhsa_accum_offset {acc}
  .amdhsa_group_segment_fixed_size 0
  .amdhsa_kernarg_size 48
  .amdhsa_user_sgpr_count 2
  .amdhsa_user_sgpr_kernarg_segment_ptr 1
  .amdhsa_system_sgpr_workgroup_id_x 1
.end_amdhsa_kernel
'''

if __name__ == '__main__':
    out = sys.argv[1]
    STAMP = '--stamp' in sys.argv
    sys.argv = [a for a in sys.argv if a != '--stamp']
    stflags = sys.argv[2] if len(sys.argv) > 2 else ''
    p = Prog()
    p.raw(HDR.rstrip())
    p.raw('; @launch kernel=fold_kernel grid=(72,1,1) block=(64,1,1) lds=0')
    p.raw(f'; @launch kernel={NAME}_kernel grid=(196,1,1) block=(256,1,1) lds=147456')
    p.raw('.amdgcn_target "amdgcn-amd-amdhsa--gfx950"')
    p.raw('.text')
    p.raw(f'.globl {NAME}_kernel\n.type {NAME}_kernel,@function\n.globl fold_kernel\n.type fold_kernel,@function')
    fold_kernel(p)
    main_kernel(p, (' ' + stflags) if stflags else '')
    p.raw('.section .rodata,"a"')
    p.raw(kd('fold_kernel', 176, 176))
    p.raw(kd(NAME + '_kernel', 384, 256))
    open(out, 'w').write(p.text())
    print('nops', p.nops, 'waits', p.waits, p.count, file=sys.stderr)
```
